```python
import torch

def _softmax(x, axis=-1):
    return torch.softmax(x, dim=axis)
def _gelu(x):
    return torch.nn.functional.gelu(x, approximate="tanh")
def _silu(x):
    return torch.nn.functional.silu(x)
def _sigmoid(x):
    return torch.sigmoid(x)
def _layernorm(x, axis=-1, eps=1e-5):
    m = x.mean(dim=axis, keepdim=True)
    v = x.var(dim=axis, keepdim=True, unbiased=False)
    return (x - m) / torch.sqrt(v + eps)
def _scatter_add(tgt, idx, src, axis=0):
    return tgt.clone().index_add_(axis, idx, src)
def _segment_sum(src, seg, n):
    out = torch.zeros((n,) + src.shape[1:], dtype=src.dtype)
    return out.index_add_(0, seg, src)
def _pad(x, pw):
    flat = tuple(v for pair in reversed(pw) for v in pair)
    return torch.nn.functional.pad(x, flat)

kernel_name = 'recurrent_scan__sliding_local_dilated__swiglu_ffn__prompt'

def setup_inputs():

    _w = (lambda a: (lambda t: t.to(torch.bfloat16) if t.is_floating_point() else t)(torch.as_tensor(a)))
    def _A_setup():
        B, S, D = 1, 2048, 448
        return {
            "x": _w((lambda *s: torch.randn(*s, dtype=torch.bfloat16) * 0.05)(B, S, D)),
            "wqkv": _w((lambda *s: torch.randn(*s, dtype=torch.bfloat16) * 0.05)(D, 3 * D)),
            "wo": _w((lambda *s: torch.randn(*s, dtype=torch.bfloat16) * 0.05)(D, D)),
        }
    _A_in = _A_setup()

    def _B_setup():
        B, S, D, F = 1, 2048, 448, 1792
        return {
            "x": _w((lambda *s: torch.randn(*s, dtype=torch.bfloat16) * 0.05)(B, S, D)),
            "w_gate": _w((lambda *s: torch.randn(*s, dtype=torch.bfloat16) * 0.05)(D, F)),
            "w_up": _w((lambda *s: torch.randn(*s, dtype=torch.bfloat16) * 0.05)(D, F)),
            "w_down": _w((lambda *s: torch.randn(*s, dtype=torch.bfloat16) * 0.05)(F, D)),
        }
    _B_in = _B_setup()

    return {
        "A_x": _A_in["x"],
        "A_wqkv": _A_in["wqkv"],
        "A_wo": _A_in["wo"],
        "B_x": _B_in["x"],
        "B_w_gate": _B_in["w_gate"],
        "B_w_up": _B_in["w_up"],
        "B_w_down": _B_in["w_down"],
    }

def reference(A_x, A_wqkv, A_wo, B_x, B_w_gate, B_w_up, B_w_down):
    def _A_ref(x, wqkv, wo):
        B, S, D = x.shape
        H = 16; Dh = D // H
        W, dil = 8, 2
        qkv = (lambda x, *d: x.permute(*d))((x @ wqkv).reshape(B, S, 3, H, Dh), 2, 0, 3, 1, 4)
        q, k, v = qkv[0], qkv[1], qkv[2]
        scale = Dh ** -0.5
        pos = torch.arange(S)
        off = torch.arange(W) * dil
        idx = pos[:, None] - off[None, :]
        mask = idx >= 0
        idx_c = torch.where(mask, idx, 0).reshape(-1)
        kg = k[:, :, idx_c, :].reshape(B, H, S, W, Dh)
        vg = v[:, :, idx_c, :].reshape(B, H, S, W, Dh)
        logits = torch.einsum("bhsd,bhswd->bhsw", q, kg) * scale
        logits = torch.where(mask[None, None, :, :], logits, -1e9)
        attn = _softmax(logits, axis=-1)
        o = torch.einsum("bhsw,bhswd->bhsd", attn, vg)
        return (lambda x, *d: x.permute(*d))(o, 0, 2, 1, 3).reshape(B, S, D) @ wo

    def _B_ref(x, w_gate, w_up, w_down):
        g = _silu(x @ w_gate)
        u = x @ w_up
        return (g * u) @ w_down

    x = A_x
    xn = _layernorm(x, axis=-1)
    s = _A_ref(xn, A_wqkv, A_wo)
    g = _silu(_B_ref(xn, B_w_gate, B_w_up, B_w_down))
    return x + s * g
```

```python
import re

TRANS = ("v_exp_f32", "v_log_f32", "v_rcp_f32", "v_rsq_f32", "v_sqrt_f32", "v_sin_f32", "v_cos_f32")


def vr(a, n=1, p="v"):
    return f"{p}{a}" if n == 1 else f"{p}[{a}:{a+n-1}]"


def ar(a, n=1):
    return vr(a, n, "a")


def sr(a, n=1):
    return vr(a, n, "s")


class G:
    def __init__(self):
        self.out = []
        self.vm = 0
        self.lg = 0
        self.vm_done = 0
        self.lg_done = 0

    def e(self, s):
        self.out.append("  " + s)

    def c(self, s):
        self.out.append("  ; " + s)

    def label(self, l):
        self.out.append(l + ":")

    def vmem(self, s):
        self.e(s)
        self.vm += 1
        return self.vm

    def lds(self, s):
        self.e(s)
        self.lg += 1
        return self.lg

    def wait(self, vm=None, lg=None):
        parts = []
        if vm is not None and vm > self.vm_done:
            n = self.vm - vm
            assert n >= 0
            parts.append(f"vmcnt({min(n,63)})")
            self.vm_done = vm if n <= 63 else self.vm - 63
        if lg is not None and lg > self.lg_done:
            n = self.lg - lg
            assert n >= 0
            parts.append(f"lgkmcnt({min(n,15)})")
            self.lg_done = lg if n <= 15 else self.lg - 15
        if parts:
            self.e("s_waitcnt " + " ".join(parts))

    def wait_all(self):
        self.e("s_waitcnt vmcnt(0) lgkmcnt(0)")
        self.vm_done = self.vm
        self.lg_done = self.lg

    def state(self):
        return (self.vm, self.lg, self.vm_done, self.lg_done)

    def restore(self, st):
        self.vm, self.lg, self.vm_done, self.lg_done = st

    def text(self):
        return "\n".join(self.out) + "\n"


_REG = re.compile(r"\b([vas])(?:(\d+)|\[(\d+):(\d+)\])(?![\w])")


def _regs(tok):
    tok = tok.strip()
    res = set()
    for m in _REG.finditer(tok):
        p = m.group(1)
        if m.group(2) is not None:
            res.add((p, int(m.group(2))))
        else:
            for i in range(int(m.group(3)), int(m.group(4)) + 1):
                res.add((p, i))
    if re.search(r"\bvcc\b", tok):
        res.add(("s", 106)); res.add(("s", 107))
    if re.search(r"\bm0\b", tok):
        res.add(("s", 124))
    if re.search(r"\bexec\b", tok):
        res.add(("s", 126)); res.add(("s", 127))
    return res


class Ins:
    __slots__ = ("op", "w", "r", "kind", "passes", "srcc", "srcab", "text", "states", "data")


def parse(line):
    s = line.split(";")[0].strip()
    if not s or s.endswith(":") or s.startswith("."):
        return None
    parts = s.split(None, 1)
    op = parts[0]
    ops = [o.strip() for o in parts[1].split(",")] if len(parts) > 1 else []
    I = Ins()
    I.op = op; I.text = s; I.w = set(); I.r = set(); I.passes = 0; I.srcc = set(); I.srcab = set(); I.states = 1
    I.data = set()
    if op == "s_nop":
        I.kind = "nop"; I.states = int(ops[0], 0) + 1
        return I
    if op.startswith("v_mfma"):
        I.kind = "mfma"
        I.w = _regs(ops[0]); I.srcab = _regs(ops[1]) | _regs(ops[2]); I.srcc = _regs(ops[3])
        I.r = I.srcab | I.srcc
        if "32x32x16" in op: I.passes = 8
        elif "16x16x32" in op or "16x16x16" in op: I.passes = 4
        elif "16x16x4_f32" in op: I.passes = 8; I.kind = "sgemm"
        else: raise ValueError(op)
        return I
    if op.startswith("v_"):
        I.kind = "valu"
        if op.startswith("v_permlane"):
            I.w = _regs(ops[0]) | _regs(ops[1]); I.r = set(I.w)
        elif op.startswith("v_cmp"):
            I.w = _regs(ops[0])
            for o in ops[1:]: I.r |= _regs(o)
        else:
            I.w = _regs(ops[0])
            rest = ops[1:]
            if op.startswith(("v_add_co", "v_sub_co", "v_addc_co")):
                I.w |= _regs(ops[1]); rest = ops[2:]
            for o in rest: I.r |= _regs(o)
            if op.startswith(("v_fmac", "v_dot2c")):
                I.r |= I.w
        return I
    if op.startswith("ds_"):
        I.kind = "ds"
        if op.startswith(("ds_read", "ds_bpermute", "ds_swizzle")):
            I.w = _regs(ops[0])
            for o in ops[1:]: I.r |= _regs(o)
        else:
            for o in ops: I.r |= _regs(o)
        return I
    if op.startswith(("buffer_", "global_")):
        I.kind = "vmem"
        is_lds = re.search(r"\blds\b", s) is not None or "_lds_" in op
        if "load" in op and not is_lds:
            I.w = _regs(ops[0])
            for o in ops[1:]: I.r |= _regs(o)
        else:
            for o in ops: I.r |= _regs(o)
            if "store" in op and ("x4" in op or "x3" in op):
                I.data = _regs(ops[0]) if op.startswith("buffer_") else _regs(ops[1])
        if is_lds:
            I.r.add(("s", 124)); I.kind = "dma"
        return I
    if op.startswith("s_"):
        I.kind = "salu"
        if op.startswith(("s_cmp", "s_cbranch", "s_branch", "s_waitcnt", "s_barrier", "s_endpgm", "s_sleep", "s_setprio")):
            for o in ops: I.r |= _regs(o)
        else:
            if ops: I.w = _regs(ops[0])
            for o in ops[1:]: I.r |= _regs(o)
        return I
    raise ValueError("unparsed: " + s)


def need(p, c):
    n = 0
    pv = {x for x in p.w if x[0] in "va"}
    ps = {x for x in p.w if x[0] == "s"}
    c_all = c.r | c.w
    if p.kind == "valu":
        if c.kind in ("mfma", "sgemm") and pv & c.r: n = max(n, 2)
        if p.op.startswith(TRANS) and c.kind in ("valu",) and pv & c.r and not c.op.startswith(TRANS): n = max(n, 1)
        if p.op.startswith(TRANS) and c.kind in ("valu", "vmem", "ds") and pv & c.r: n = max(n, 1)
        if c.op.startswith("v_permlane") and pv & c.r: n = max(n, 2)
        if c.op.startswith(("v_readfirstlane", "v_readlane")) and pv & c.r: n = max(n, 1)
        if "dpp" in c.text and pv & c.r: n = max(n, 2)
        if ps:
            if c.kind == "valu" and ps & c.r: n = max(n, 2)
            if c.kind in ("vmem", "dma") and ps & c.r: n = max(n, 5)
            if c.kind == "salu" and ps & c.r and not c.op.startswith("s_cbranch"): n = max(n, 1)
        if p.op.startswith("v_dot2"):
            if pv & c_all:
                if c.op == p.op and not (pv & (c.r - c.w)) and p.op.startswith("v_dot2c"):
                    pass
                else:
                    n = max(n, 3)
    if p.kind == "mfma":
        big = {4: 8, 8: 12}[p.passes]
        if c.kind in ("valu", "vmem", "ds", "dma") and pv & c_all: n = max(n, big)
        if c.kind in ("mfma", "sgemm"):
            if pv & c.srcab: n = max(n, big)
            if pv & c.srcc:
                if c.kind == "mfma" and c.srcc == pv and c.passes == p.passes: pass
                else: n = max(n, {4: 6, 8: 10}[p.passes])
            elif pv & c.w:
                n = max(n, {4: 6, 8: 10}[p.passes])
        if c.kind == "valu" and p.srcc & c.w: n = max(n, {4: 3, 8: 7}[p.passes])
    if p.kind == "sgemm":
        if c.kind in ("valu", "vmem", "ds", "dma") and pv & c_all: n = max(n, 10)
        if c.kind in ("mfma", "sgemm"):
            if pv & c.srcab: n = max(n, 10)
            if pv & (c.srcc | c.w): n = max(n, 8)
    if p.kind == "salu":
        if ("s", 124) in ps and c.kind == "dma": n = max(n, 1)
    if p.kind == "vmem" and p.data:
        if c.kind in ("valu", "mfma", "sgemm") and p.data & c.w: n = max(n, 2)
        elif p.data & c.w: n = max(n, 1)
    return n


def fix_hazards(lines, verbose=False):
    out = []
    hist = []
    inserted = 0
    for line in lines:
        I = parse(line)
        if I is None:
            out.append(line)
            continue
        dist = 0
        req = 0
        for p in reversed(hist):
            if dist >= 20: break
            n = need(p, I)
            if n > dist: req = max(req, n - dist)
            dist += p.states
        while req > 0:
            k = min(req, 16)
            nop = f"  s_nop {k-1}"
            if verbose: print("hazard pad", k, "before:", line.strip())
            out.append(nop + "   ; hz")
            hist.append(parse(nop))
            inserted += k
            req -= k
        out.append(line)
        hist.append(I)
        if len(hist) > 40: hist = hist[-30:]
    return out, inserted
```

```python
import sys, math, struct
sys.path.insert(0, "dev")
from asmlib import *

KNAME = "recurrent_scan__sliding_local_dilated__swiglu_ffn__prompt_kernel"

A_WS = 0
KV_WS = 0xA00000
FLAG_WS = 0xE00000
TS_WS = 0xF00000
WS_BYTES = 0x1000000
LDS_BYTES = 163840
NSLOT = 9
XLDS = 49152
MISC = 147456

sWG, sT0, sW, sRB, sC, sROT, sRH, sCT, sT1, sT2 = 2, 3, 4, 5, 6, 7, 8, 9, 10, 11
sT3, sT4, sFLG, sTMO = 12, 13, 14, 15
P_X, P_QKV, P_WO, P_BX, P_G, P_U, P_D, P_OUT, P_DBG, P_WS = [16 + 2 * i for i in range(10)]
SX, SKV, SG, SU, SD, SO, SWS, SOUT, SDBG = 36, 40, 44, 48, 52, 56, 60, 64, 68
KX, KQ, KF = 72, 79, 86
sM0W, sXL, sC10, sC01, sA2 = 93, 94, 95, 96, 97
sNON = 98
sT5, sT6 = 100, 101
TSR = 16

def XF(i): return 16 + 4 * i
ACC_A, ACC_B, ACC_C = 128, 160, 192
TMP = 224
SC = 240
vTR = [1, 2]
vDQ = [3, 4]
vDF = [5, 6]
vD2, vSKV, vSH = 7, 8, 9
vC1, vDEN2, vRSTD, vNEGM = 10, 11, 12, 13
vNON = 14
LOG2E = 1.4426950408889634


def f2u(x):
    return struct.unpack("<I", struct.pack("<f", x))[0]


class Gen:
    def __init__(self, opt):
        self.o = opt
        self.g = G()
        self.slow = []
        self.nts = 0
        self.uid = 0

    def ts(self, name):
        if not self.o.get("ts"): return
        assert self.nts < 10
        self.g.e(f"s_memrealtime {sr(TSR + 2*self.nts, 2)}")
        self.nts += 1

    def ts_store(self):
        if not self.o.get("ts"): return
        g = self.g
        g.e("s_waitcnt lgkmcnt(0)")
        g.e(f"s_lshl_b32 {sr(sT0)}, {sr(sWG)}, 2")
        g.e(f"s_add_u32 {sr(sT0)}, {sr(sT0)}, {sr(sW)}")
        g.e(f"s_lshl_b32 {sr(sT0)}, {sr(sT0)}, 7")
        g.e(f"s_add_u32 {sr(sT0)}, {sr(sT0)}, {TS_WS}")
        g.e("s_mov_b64 exec, 1")
        for i in range(self.nts):
            g.e(f"v_mov_b32 v0, {sr(TSR+2*i)}")
            g.e(f"v_mov_b32 v1, {sr(TSR+2*i+1)}")
            g.vmem(f"buffer_store_dwordx2 v[0:1], off, {sr(SWS,4)}, {sr(sT0)} offset:{8*i}")
            g.e("s_nop 1")
        g.e(f"v_mov_b32 v0, {sr(sNON)}")
        g.e(f"v_mov_b32 v1, {sr(sNON+1)}")
        g.vmem(f"buffer_store_dwordx2 v[0:1], off, {sr(SWS,4)}, {sr(sT0)} offset:120")
        g.e("s_mov_b64 exec, -1")

    def srd(self, d, p, size, off_sreg=None, off_imm=0):
        g = self.g
        if off_sreg is None and off_imm == 0:
            g.e(f"s_mov_b32 {sr(d)}, {sr(p)}")
            g.e(f"s_mov_b32 {sr(d+1)}, {sr(p+1)}")
            g.e(f"s_mov_b32 {sr(d+2)}, {size}")
        else:
            assert off_sreg is not None
            g.e(f"s_add_u32 {sr(d)}, {sr(p)}, {sr(off_sreg)}")
            g.e(f"s_addc_u32 {sr(d+1)}, {sr(p+1)}, 0")
            g.e(f"s_sub_u32 {sr(d+2)}, {size}, {sr(off_sreg)}")
        g.e(f"s_mov_b32 {sr(d+3)}, 0x00020000")

    def srd_bump(self, d, delta):
        g = self.g
        if delta >= 0:
            return [f"s_add_u32 {sr(d)}, {sr(d)}, {delta}", f"s_addc_u32 {sr(d+1)}, {sr(d+1)}, 0",
                    f"s_sub_u32 {sr(d+2)}, {sr(d+2)}, {delta}"]
        return [f"s_sub_u32 {sr(d)}, {sr(d)}, {-delta}", f"s_subb_u32 {sr(d+1)}, {sr(d+1)}, 0",
                f"s_add_u32 {sr(d+2)}, {sr(d+2)}, {-delta}"]

    def poll_issue(self, vdata, voff, srd, soff, imm=0):
        return (self.g.vmem(f"buffer_load_dwordx2 {vr(vdata,2)}, {vr(voff)}, {sr(srd,4)}, {soff} offen offset:{imm} sc1"),
                vdata, voff, srd, soff, imm)

    def poll_check(self, h, against_nonce=True):
        g = self.g
        tok, vdata, voff, srd, soff, imm = h
        self.uid += 1
        u = self.uid
        g.wait(vm=tok)
        cmp = (f"v_cmp_ne_u64 vcc, {vr(vdata,2)}, {vr(vNON,2)}" if against_nonce
               else f"v_cmp_eq_u64 vcc, 0, {vr(vdata,2)}")
        if self.o.get("nopoll"):
            return
        g.e(cmp)
        g.e(f"s_cbranch_vccnz SLOW{u}")
        g.label(f"BACK{u}")
        L = [f"SLOW{u}:",
             f"  s_mov_b32 {sr(sTMO)}, {self.o.get('tmo', 200000)}",
             f"SLOWL{u}:",
             "  s_sleep 1",
             f"  buffer_load_dwordx2 {vr(vdata,2)}, {vr(voff)}, {sr(srd,4)}, {soff} offen offset:{imm} sc1",
             "  s_waitcnt vmcnt(0)",
             "  " + cmp,
             f"  s_cbranch_vccz BACK{u}",
             f"  s_sub_u32 {sr(sTMO)}, {sr(sTMO)}, 1",
             f"  s_cbranch_scc0 SLOWL{u}",
             f"  s_branch BACK{u}"]
        self.slow.append(L)

    def flag_store(self, stage, idx_sreg_x8):
        g = self.g
        g.e("s_mov_b64 exec, 1")
        g.vmem(f"buffer_store_dwordx2 {vr(vNON,2)}, off, {sr(SWS,4)}, {sr(sFLG)} offset:{stage*512} sc1")
        g.e("s_mov_b64 exec, -1")

    def lds_addr(self, sig):
        return ((sig // 4) % NSLOT) * 16384 + (sig % 4) * 4096

    def ring_init(self, slabs):
        self.slabs = slabs
        self.dma_tok = {}
        self.rd_tok = {}
        self.dma_next = 0
        self.dma_allowed = 12
        self.win = {}

    def dma_issue(self, n=1):
        g = self.g
        for _ in range(n):
            s = self.dma_next
            if s >= min(self.dma_allowed, len(self.slabs)): return
            d = self.slabs[s]
            for pre in d.get("pre", []): g.e(pre)
            g.e(f"s_add_u32 m0, {sr(sM0W)}, {self.lds_addr(s)}")
            soff = d["soff"]
            if isinstance(soff, int):
                g.e(f"s_mov_b32 {sr(sT5)}, {soff}")
                soff = sr(sT5)
            else:
                g.e("s_nop 0") if False else None
            self.dma_tok[s] = g.vmem(f"buffer_load_dwordx4 {vr(d['voff'])}, {sr(d['srd'],4)}, {soff} offen lds")
            self.dma_next += 1

    def set_window(self, base, w):
        cur = self.win.get(base, 0)
        if cur != w:
            self.g.e(f"v_add_u32 {vr(base)}, {((w-cur)*65536) & 0xffffffff}, {vr(base)}")
            self.win[base] = w

    def read_frag(self, sig, f):
        g = self.g
        d = self.slabs[sig]
        base, o0, o1 = d["frags"][f]
        a = self.lds_addr(sig)
        self.set_window(base, a // 65536)
        a %= 65536
        dst = 16 * (sig % 2) + 4 * f
        g.lds(f"ds_read_b64_tr_b16 {ar(dst,2)}, {vr(base)} offset:{a+o0}")
        self.rd_tok[(sig, f)] = g.lds(f"ds_read_b64_tr_b16 {ar(dst+2,2)}, {vr(base)} offset:{a+o1}")

    def group_start(self, gam):
        g = self.g
        last = min(4 * (gam + 1) + 3, len(self.slabs) - 1)
        if last >= 4 * gam and last in self.dma_tok:
            g.wait(vm=self.dma_tok[last])
        else:
            assert last < 4 * gam or last in self.dma_tok, (gam, last, self.dma_next)
        if 4 * (gam + 1) < len(self.slabs) or True:
            g.e("s_barrier")
        self.dma_allowed = 4 * (gam + 9)

    def run_slabs(self, sig0, n, mfma_fn, fillers, dma_per_gap=1, per_slab_hook=None, skip_gaps=0):
        g = self.g
        gaps = sum(len(self.slabs[s]["frags"]) for s in range(sig0, sig0 + n)) - skip_gaps
        total = sum(c for c, _ in fillers)
        fi = 0
        done_cost = 0
        gi = 0
        for s in range(sig0, sig0 + n):
            if s % 4 == 0 and s > 0:
                self.group_start(s // 4)
            if per_slab_hook: per_slab_hook(s)
            nf = len(self.slabs[s]["frags"])
            nn = len(self.slabs[s + 1]["frags"]) if s + 1 < len(self.slabs) else 0
            rd = 0
            for f in range(nf):
                g.wait(lg=self.rd_tok[(s, f)])
                mfma_fn(s, f)
                want = (f + 1) * nn // nf
                while rd < want:
                    self.read_frag(s + 1, rd); rd += 1
                if f % 2 == 0 or self.dma_allowed - self.dma_next > 6:
                    self.dma_issue(dma_per_gap)
                gi += 1
                if gi > skip_gaps:
                    target = total * (gi - skip_gaps) / max(gaps, 1)
                    while fi < len(fillers) and done_cost + fillers[fi][0] / 2 <= target:
                        fillers[fi][1](); done_cost += fillers[fi][0]; fi += 1
        while fi < len(fillers):
            fillers[fi][1](); fi += 1

    def F(self, s, cost=None):
        if cost is None:
            cost = 2 if s.startswith(TRANS) else 1
        return (cost, lambda: self.g.e(s))

    def prologue(self):
        g = self.g; o = self.o
        g.e(f"s_cmp_ge_u32 {sr(sWG)}, 256")
        g.e("s_cbranch_scc1 END")
        g.e(f"s_load_dwordx16 s[16:31], s[0:1], 0")
        g.e(f"s_load_dwordx4 s[32:35], s[0:1], 64")
        g.e(f"s_memrealtime {sr(sNON,2)}")
        g.e("v_lshrrev_b32 v1, 6, v0")
        g.e("v_and_b32 v0, 63, v0")
        g.e(f"v_readfirstlane_b32 {sr(sW)}, v1")
        g.e(f"s_and_b32 {sr(sT0)}, {sr(sWG)}, 7")
        g.e(f"s_lshr_b32 {sr(sT1)}, {sr(sWG)}, 3")
        g.e(f"s_and_b32 {sr(sT2)}, {sr(sT0)}, 3")
        g.e(f"s_lshr_b32 {sr(sT3)}, {sr(sT0)}, 2")
        g.e(f"s_lshl_b32 {sr(sT3)}, {sr(sT3)}, 3")
        g.e(f"s_sub_u32 {sr(sT4)}, {sr(sT1)}, 4")
        g.e(f"s_and_b32 {sr(sT4)}, {sr(sT4)}, 31")
        g.e(f"s_mul_i32 {sr(sRH)}, {sr(sT4)}, 37")
        g.e(f"s_lshr_b32 {sr(sRH)}, {sr(sRH)}, 8")
        g.e(f"s_mul_i32 {sr(sCT)}, {sr(sRH)}, 7")
        g.e(f"s_sub_u32 {sr(sCT)}, {sr(sT4)}, {sr(sCT)}")
        g.e(f"s_lshl_b32 {sr(sT5)}, {sr(sT0)}, 2")
        g.e(f"s_add_u32 {sr(sRH)}, {sr(sRH)}, {sr(sT5)}")
        g.e(f"s_and_b32 {sr(sRH)}, {sr(sRH)}, 31")
        g.e(f"s_and_b32 {sr(sT5)}, {sr(sT2)}, 1")
        g.e(f"s_lshl_b32 {sr(sT5)}, {sr(sT5)}, 2")
        g.e(f"s_and_b32 {sr(sT6)}, {sr(sT1)}, 3")
        g.e(f"s_add_u32 {sr(sT5)}, {sr(sT5)}, {sr(sT6)}")
        g.e(f"s_lshr_b32 {sr(sC)}, {sr(sT2)}, 1")
        g.e(f"s_add_u32 {sr(sT6)}, {sr(sC)}, 12")
        g.e(f"s_cmp_lt_u32 {sr(sT1)}, 4")
        g.e(f"s_cselect_b32 {sr(sC)}, {sr(sC)}, {sr(sT6)}")
        g.e(f"s_sub_u32 {sr(sT4)}, {sr(sT1)}, 8")
        g.e(f"s_and_b32 {sr(sT4)}, {sr(sT4)}, 31")
        g.e(f"s_mul_i32 {sr(sT6)}, {sr(sT4)}, 11")
        g.e(f"s_lshr_b32 {sr(sT6)}, {sr(sT6)}, 5")
        g.e(f"s_mul_i32 {sr(sRB)}, {sr(sT6)}, 3")
        g.e(f"s_sub_u32 {sr(sT4)}, {sr(sT4)}, {sr(sRB)}")
        g.e(f"s_mul_i32 {sr(sRB)}, {sr(sT2)}, 3")
        g.e(f"s_add_u32 {sr(sT4)}, {sr(sT4)}, {sr(sRB)}")
        g.e(f"s_cmp_lt_u32 {sr(sT1)}, 8")
        g.e(f"s_cselect_b32 {sr(sC)}, {sr(sC)}, {sr(sT4)}")
        g.e(f"s_cselect_b32 {sr(sRB)}, {sr(sT5)}, {sr(sT6)}")
        g.e(f"s_and_b32 {sr(sRB)}, {sr(sRB)}, 7")
        if o.get("rot", 1):
            g.e(f"s_lshl_b32 {sr(sROT)}, {sr(sC)}, 1")
            g.e(f"s_add_u32 {sr(sROT)}, {sr(sROT)}, {sr(sRB)}")
            g.e(f"s_mul_i32 {sr(sT4)}, {sr(sROT)}, 37")
            g.e(f"s_lshr_b32 {sr(sT4)}, {sr(sT4)}, 8")
            g.e(f"s_mul_i32 {sr(sT4)}, {sr(sT4)}, 7")
            g.e(f"s_sub_u32 {sr(sROT)}, {sr(sROT)}, {sr(sT4)}")
        else:
            g.e(f"s_mov_b32 {sr(sROT)}, 0")
        g.e(f"s_add_u32 {sr(sRB)}, {sr(sRB)}, {sr(sT3)}")
        for b in range(7):
            g.e(f"s_add_u32 {sr(sT4)}, {sr(sROT)}, {b}")
            g.e(f"s_sub_u32 {sr(sT5)}, {sr(sT4)}, 7")
            g.e(f"s_cmp_ge_u32 {sr(sT4)}, 7")
            g.e(f"s_cselect_b32 {sr(sT4)}, {sr(sT5)}, {sr(sT4)}")
            g.e(f"s_lshl_b32 {sr(KX+b)}, {sr(sT4)}, 7")
            g.e(f"s_mul_i32 {sr(KQ+b)}, {sr(sT4)}, {64*2688}")
            g.e(f"s_mul_i32 {sr(KF+b)}, {sr(sT4)}, {64*3584}")
        g.e(f"s_lshl_b32 {sr(sM0W)}, {sr(sW)}, 10")
        g.e(f"s_mul_i32 {sr(sXL)}, {sr(sW)}, 28672")
        g.e(f"s_add_u32 {sr(sXL)}, {sr(sXL)}, {XLDS}")
        g.e(f"s_mov_b32 {sr(sC10)}, 0x00003f80")
        g.e(f"s_mov_b32 {sr(sC01)}, 0x3f800000")
        t = TMP
        g.e(f"v_lshrrev_b32 v1, 3, v0")
        g.e(f"v_and_b32 v2, 7, v0")
        g.e(f"v_lshrrev_b32 v3, 4, v0")
        g.e(f"v_xor_b32 v4, v2, v3")
        g.e(f"v_xor_b32 v5, 4, v4")
        g.e(f"s_lshl_b32 {sr(sT4)}, {sr(sRB)}, 7")
        g.e(f"s_lshl_b32 {sr(sT5)}, {sr(sW)}, 5")
        g.e(f"s_add_u32 {sr(sT4)}, {sr(sT4)}, {sr(sT5)}")
        g.e(f"v_add_u32 v6, {sr(sT4)}, v1")
        g.e(f"v_mul_u32_u24 v6, 896, v6")
        g.e(f"v_lshl_add_u32 {vr(t)}, v4, 4, v6")
        g.e(f"v_lshl_add_u32 {vr(t+1)}, v5, 4, v6")
        g.e(f"v_add_u32 {vr(t+1)}, {7168-1024}, {vr(t+1)}")
        g.e(f"v_add_u32 {vr(t+2)}, {2*(7168-1024)}, {vr(t)}")
        g.e(f"v_add_u32 {vr(t+3)}, {2*(7168-1024)}, {vr(t+1)}")
        g.e("s_waitcnt lgkmcnt(0)")
        self.srd(SX, P_X, 2048 * 896)
        self.xtok = []
        for b in range(7):
            g.e(f"s_add_u32 m0, {sr(sXL)}, {b*4096}")
            g.e("s_nop 0")
            for i in range(4):
                tok = g.vmem(f"buffer_load_dwordx4 {vr(t+i)}, {sr(SX,4)}, {sr(KX+b)} offen offset:{1024*i} lds")
            self.xtok.append(tok)
        self.srd(SWS, P_WS, WS_BYTES)
        self.srd(SDBG, P_DBG, 256)
        g.e(f"v_and_b32 v4, 1, v3")
        g.e(f"v_lshlrev_b32 v4, 2, v4")
        g.e(f"v_xor_b32 v4, v2, v4")
        g.e(f"v_lshrrev_b32 v5, 5, v0")
        g.e(f"v_lshlrev_b32 v5, 1, v5")
        g.e(f"v_xor_b32 v5, v4, v5")
        g.e(f"s_lshl_b32 {sr(sT5)}, {sr(sW)}, 3")
        g.e(f"v_add_u32 v6, {sr(sT5)}, v1")
        g.e(f"v_mul_u32_u24 {vr(vD2)}, 896, v6")
        g.e(f"v_lshl_add_u32 {vr(vD2)}, v5, 4, {vr(vD2)}")
        g.e(f"v_mul_u32_u24 v5, 3584, v6")
        g.e(f"v_mul_u32_u24 v3, 2688, v6")
        g.e(f"v_lshl_add_u32 {vr(vDF[0])}, v4, 4, v5")
        g.e(f"v_lshl_add_u32 {vr(vDQ[0])}, v4, 4, v3")
        g.e(f"v_add_u32 {vr(vDF[1])}, {32*3584}, {vr(vDF[0])}")
        g.e(f"v_add_u32 {vr(vDQ[1])}, {32*2688}, {vr(vDQ[0])}")
        g.e(f"s_lshl_b32 {sr(sFLG)}, {sr(sRB)}, 11")
        g.e(f"s_lshl_b32 {sr(sT5)}, {sr(sW)}, 7")
        g.e(f"s_add_u32 {sr(sFLG)}, {sr(sFLG)}, {sr(sT5)}")
        g.e(f"s_lshl_b32 {sr(sT5)}, {sr(sC)}, 3")
        g.e(f"s_add_u32 {sr(sFLG)}, {sr(sFLG)}, {sr(sT5)}")
        g.e(f"s_add_u32 {sr(sFLG)}, {sr(sFLG)}, {FLAG_WS}")
        g.e(f"s_or_b32 {sr(sT5)}, {sr(sWG)}, {sr(sW)}")
        g.e(f"s_cmp_lg_u32 {sr(sT5)}, 0")
        g.e("s_cbranch_scc1 NONONCE")
        g.e(f"s_or_b32 {sr(sNON)}, {sr(sNON)}, 1")
        g.e(f"v_mov_b32 {vr(vNON)}, {sr(sNON)}")
        g.e(f"v_mov_b32 {vr(vNON+1)}, {sr(sNON+1)}")
        g.e("s_mov_b64 exec, 1")
        g.e(f"buffer_store_dwordx2 {vr(vNON,2)}, off, {sr(SDBG,4)}, 0 sc1")
        g.e("s_mov_b64 exec, -1")
        g.label("NONONCE")
        g.e(f"s_cmp_lt_u32 {sr(sT1)}, 4")
        g.e("s_cbranch_scc1 LIGHT")

    def lane_setup(self):
        g = self.g
        t = TMP + 8
        g.e(f"v_lshrrev_b32 {vr(t)}, 5, v0")
        g.e(f"v_bfe_u32 {vr(t+1)}, v0, 2, 2")
        g.e(f"v_lshl_add_u32 {vr(t+2)}, {vr(t)}, 3, {vr(t+1)}")
        g.e(f"v_lshlrev_b32 {vr(t+2)}, 7, {vr(t+2)}")
        g.e(f"v_bfe_u32 {vr(t+3)}, v0, 3, 1")
        g.e(f"v_lshlrev_b32 {vr(t+3)}, 6, {vr(t+3)}")
        g.e(f"v_bfe_u32 {vr(t+4)}, v0, 4, 1")
        g.e(f"v_lshl_add_u32 {vr(t+3)}, {vr(t+4)}, 5, {vr(t+3)}")
        g.e(f"v_and_b32 {vr(t+4)}, 3, v0")
        g.e(f"v_lshl_add_u32 {vr(t+3)}, {vr(t+4)}, 3, {vr(t+3)}")
        g.e(f"v_add_u32 {vr(vTR[0])}, {vr(t+2)}, {vr(t+3)}")
        g.e(f"v_xor_b32 {vr(vTR[1])}, 64, {vr(vTR[0])}")
        g.e(f"v_and_b32 {vr(t+1)}, 31, v0")
        g.e(f"v_bfe_u32 {vr(t+2)}, v0, 1, 3")
        g.e(f"v_xor_b32 {vr(t+2)}, {vr(t+2)}, {vr(t)}")
        g.e(f"v_lshlrev_b32 {vr(t+2)}, 4, {vr(t+2)}")
        g.e(f"v_lshl_add_u32 {vr(t+2)}, {vr(t+1)}, 7, {vr(t+2)}")
        g.e(f"v_add_u32 {vr(TMP+4)}, {sr(sXL)}, {vr(t+2)}")
        for sp in range(1, 4):
            g.e(f"v_xor_b32 {vr(TMP+4+sp)}, {32*sp}, {vr(TMP+4)}")
        g.e(f"v_and_b32 {vr(t+1)}, 15, v0")
        g.e(f"v_lshlrev_b32 {vr(t+1)}, 4, {vr(t+1)}")
        g.e(f"v_lshl_add_u32 {vr(t+1)}, {vr(t)}, 8, {vr(t+1)}")
        g.e(f"v_bfe_u32 {vr(t+2)}, v0, 4, 1")
        g.e(f"v_lshl_add_u32 {vr(vSKV)}, {vr(t+2)}, 10, {vr(t+1)}")
        g.e(f"v_mul_u32_u24 {vr(t+2)}, {70*1024}, {vr(t+2)}")
        g.e(f"v_add_u32 {vr(vSH)}, {vr(t+2)}, {vr(t+1)}")

    def stats(self):
        g = self.g
        ONES = SC
        for i in range(4): g.e(f"v_mov_b32 {vr(ONES+i)}, 0x3f803f80")
        g.e(f"v_mov_b32 {vr(TMP+12)}, 0")
        g.e(f"v_mov_b32 {vr(TMP+13)}, 0")
        toks = {}
        first = True

        def proc(b):
            nonlocal first
            for sp in range(4):
                i = 4 * b + sp
                g.wait(lg=toks[i])
                g.e(f"v_mfma_f32_32x32x16_bf16 {vr(ACC_C,16)}, {vr(ONES,4)}, {vr(XF(i),4)}, {'0' if first else vr(ACC_C,16)}")
                first = False
                for r in range(4):
                    g.e(f"v_dot2c_f32_bf16 {vr(TMP+12+(r&1))}, {vr(XF(i)+r)}, {vr(XF(i)+r)}")
        for b in range(7):
            g.wait(vm=self.xtok[b])
            for sp in range(4):
                toks[4 * b + sp] = g.lds(f"ds_read_b128 {vr(XF(4*b+sp),4)}, {vr(TMP+4+sp)} offset:{b*4096}")
            if b > 0: proc(b - 1)
        proc(6)
        self.ts("x_done")

    def mean(self):
        g = self.g
        g.e(f"v_mul_f32 {vr(TMP+14)}, {f2u(1.0/448):#x}, {vr(ACC_C)}")
        g.e(f"v_cvt_pk_bf16_f32 {vr(vNEGM)}, {vr(TMP+14)}, {vr(TMP+14)}")
        g.e(f"v_and_b32 {vr(vNEGM)}, 0xffff0000, {vr(vNEGM)}")
        g.e(f"v_xor_b32 {vr(vNEGM)}, 0x80000000, {vr(vNEGM)}")

    def center_fillers(self, i):
        t = TMP + 0
        F = []
        for r in range(4):
            F.append(self.F(f"v_dot2_f32_bf16 {vr(t+2*r)}, {vr(XF(i)+r)}, {sr(sC10)}, {vr(vNEGM)}"))
            F.append(self.F(f"v_dot2_f32_bf16 {vr(t+2*r+1)}, {vr(XF(i)+r)}, {sr(sC01)}, {vr(vNEGM)}"))
        for r in range(4):
            F.append(self.F(f"v_cvt_pk_bf16_f32 {vr(XF(i)+r)}, {vr(t+2*r)}, {vr(t+2*r+1)}"))
        return F

    def rstd_fillers(self):
        a, b = TMP + 8, TMP + 9
        q0, q1, mean = TMP + 12, TMP + 13, TMP + 14
        L = [f"v_add_f32 {vr(q0)}, {vr(q0)}, {vr(q1)}",
             f"v_mov_b32 {vr(q1)}, {vr(q0)}",
             f"v_mul_f32 {vr(a)}, {vr(mean)}, {vr(mean)}",
             "s_nop 0",
             f"v_permlane32_swap_b32 {vr(q0)}, {vr(q1)}",
             f"v_add_f32 {vr(q0)}, {vr(q0)}, {vr(q1)}",
             f"v_mul_f32 {vr(q0)}, {f2u(1.0/448):#x}, {vr(q0)}",
             f"v_sub_f32 {vr(q0)}, {vr(q0)}, {vr(a)}",
             f"v_max_f32 {vr(q0)}, 0, {vr(q0)}",
             f"v_cvt_pk_bf16_f32 {vr(q0)}, {vr(q0)}, {vr(q0)}",
             f"v_and_b32 {vr(q0)}, 0xffff0000, {vr(q0)}",
             f"v_add_f32 {vr(q0)}, {f2u(1e-5):#x}, {vr(q0)}",
             f"v_cvt_pk_bf16_f32 {vr(q0)}, {vr(q0)}, {vr(q0)}",
             f"v_and_b32 {vr(q0)}, 0xffff0000, {vr(q0)}",
             f"v_sqrt_f32 {vr(q0)}, {vr(q0)}",
             f"v_cvt_pk_bf16_f32 {vr(q0)}, {vr(q0)}, {vr(q0)}",
             f"v_and_b32 {vr(q0)}, 0xffff0000, {vr(q0)}",
             f"v_rcp_f32 {vr(vRSTD)}, {vr(q0)}",
             f"v_mul_f32 {vr(vDEN2)}, {vr(q0)}, {vr(q0)}",
             f"v_mul_f32 {vr(vC1)}, {f2u(-LOG2E):#x}, {vr(vRSTD)}"]
        return [self.F(s) for s in L]

    def p1_frags(self, Ts=(0, 1), base=None):
        fr = []
        for t in range(2):
            for T in Ts:
                fr.append((vTR[T] if base is None else base, t * 2048, t * 2048 + 512))
        return fr

    def p1_mfma(self, sig0, acc, swap=False, Ts=(0, 1)):
        def fn(s, f):
            sl = s - sig0
            t, Ti = divmod(f, len(Ts))
            xi = 2 * sl + t
            d = acc + 16 * Ti
            w = ar(16 * (s % 2) + 4 * f, 4)
            x = vr(XF(xi), 4)
            c = "0" if (sl == 0 and t == 0) else vr(d, 16)
            if swap:
                self.g.e(f"v_mfma_f32_32x32x16_bf16 {vr(d,16)}, {x}, {w}, {c}")
            else:
                self.g.e(f"v_mfma_f32_32x32x16_bf16 {vr(d,16)}, {w}, {x}, {c}")
        return fn

    def pack_store_fillers(self, acc, voff, soff, strideT, pre_mul=None):
        F = []
        hold = {}
        for T in range(2):
            for u in range(2):
                t = TMP + 8 * ((2 * T + u) % 2)
                regs = [acc + 16 * T + 4 * q + r for q in (u, u + 2) for r in range(4)]
                if pre_mul:
                    for rg in regs: F.append(self.F(pre_mul(rg)))
                for k in range(4):
                    F.append(self.F(f"v_cvt_pk_bf16_f32 {vr(t+k)}, {vr(regs[2*k])}, {vr(regs[2*k+1])}"))

                def st(t=t, T=T, u=u):
                    hold["tok"] = self.g.vmem(
                        f"buffer_store_dwordx4 {vr(t,4)}, {vr(voff)}, {sr(SWS,4)}, {soff} offen offset:{T*strideT+u*512} sc1")
                F.append((1, st))
        return F, hold

    def silu_fillers(self, acc):
        F = []
        NB = 4
        for r0 in range(0, 32, NB):
            t = TMP + 4 + 8 * ((r0 // NB) % 2)
            rs = range(r0, r0 + NB)
            for k, r in enumerate(rs): F.append(self.F(f"v_mul_f32 {vr(t+k)}, {vr(acc+r)}, {vr(vC1)}"))
            for k, r in enumerate(rs): F.append(self.F(f"v_exp_f32 {vr(t+k)}, {vr(t+k)}"))
            for k, r in enumerate(rs): F.append(self.F(f"v_fma_f32 {vr(t+k)}, {vr(t+k)}, {vr(vDEN2)}, {vr(vDEN2)}"))
            for k, r in enumerate(rs): F.append(self.F(f"v_rcp_f32 {vr(t+k)}, {vr(t+k)}"))
            for k, r in enumerate(rs): F.append(self.F(f"v_mul_f32 {vr(acc+r)}, {vr(acc+r)}, {vr(t+k)}"))
        return F

    def start_ring(self):
        g = self.g
        self.mean()
        g.wait(vm=self.dma_tok[7])
        g.wait(lg=g.lg)
        g.e("s_barrier")
        self.dma_allowed = 36
        for f in range(len(self.slabs[0]["frags"])): self.read_frag(0, f)
        self.dma_issue(4)
        for c, fn in self.center_fillers(0) + self.center_fillers(1): fn()
        self.dma_issue(4)
        self.ts("ring_start")

    def nonce_fillers(self):
        h = {}
        z = TMP + 15

        def issue():
            self.g.e(f"v_mov_b32 {vr(z)}, 0")
            h["h"] = self.poll_issue(vNON, z, SDBG, "0")

        def check():
            if self.o.get("nopoll"):
                self.g.wait(vm=h["h"][0])
            else:
                self.poll_check(h["h"], against_nonce=False)
        return (2, issue), (3, check)

    def heavy(self):
        g = self.g; o = self.o
        g.c("==================== HEAVY ====================")
        g.e(f"s_lshl_b32 {sr(sT4)}, {sr(sC)}, 7")
        g.e(f"s_add_u32 {sr(sT4)}, {sr(sT4)}, 896")
        self.srd(SKV, P_QKV, 448 * 2688, sT4)
        g.e(f"s_lshl_b32 {sr(sT4)}, {sr(sC)}, 8")
        self.srd(SG, P_G, 448 * 3584, sT4)
        self.srd(SU, P_U, 448 * 3584, sT4)
        g.e(f"s_lshl_b32 {sr(sT4)}, {sr(sCT)}, 7")
        self.srd(SD, P_D, 1792 * 896, sT4)
        self.srd(SO, P_WO, 448 * 896, sT4)
        self.srd(SOUT, P_OUT, 2048 * 896)
        slabs = []
        for ln, (srd, ko, vo) in enumerate([(SKV, KQ, vDQ), (SG, KF, vDF), (SU, KF, vDF), (SG, KF, vDF), (SU, KF, vDF)]):
            for s in range(14):
                d = dict(srd=srd, soff=sr(ko + s // 2), voff=vo[s % 2], frags=self.p1_frags())
                if ln >= 3 and s == 0: d["pre"] = self.srd_bump(srd, 128)
                slabs.append(d)
        P2TR = [SC + i for i in range(4)]
        order = o.get("p2order", "h0,o,h1").split(",")
        ks_list = []
        for part in order:
            if part == "h0": ks_list += [4 * c + u for c in range(14) for u in range(2)]
            if part == "h1": ks_list += [4 * c + 2 + u for c in range(14) for u in range(2)]
            if part == "o": ks_list += [56 + p for p in range(14)]
        for ks in ks_list:
            if ks < 56: srd, so = SD, ks * 32 * 896
            else: srd, so = SO, (ks - 56) * 32 * 896
            slabs.append(dict(srd=srd, soff=so, voff=vD2, frags=[(P2TR[T], 0, 2048) for T in range(4)], ks=ks))
        self.ring_init(slabs)
        self.dma_issue(12)
        self.ts("issued")
        self.lane_setup()
        g.e(f"s_lshl_b32 {sr(sT4)}, {sr(sRB)}, 2")
        g.e(f"s_add_u32 {sr(sT4)}, {sr(sT4)}, {sr(sW)}")
        g.e(f"s_lshl_b32 {sr(sT5)}, {sr(sC)}, 12")
        g.e(f"s_mul_i32 {sr(sT1)}, {sr(sT4)}, 57344")
        g.e(f"s_add_u32 {sr(sT1)}, {sr(sT1)}, {sr(sT5)}")
        g.e(f"s_add_u32 {sr(sT1)}, {sr(sT1)}, {KV_WS}")
        g.e(f"s_mul_i32 {sr(sT2)}, {sr(sT4)}, {2*71680}")
        g.e(f"s_add_u32 {sr(sT2)}, {sr(sT2)}, {sr(sT5)}")
        g.e(f"s_add_u32 {sr(sT3)}, {sr(sT2)}, 2048")
        self.stats()
        self.start_ring()

        def kv_stage(isV):
            F = []
            for s in range(13):
                F += self.center_fillers(2 * s + 2) + self.center_fillers(2 * s + 3)
            for s in range(14):
                fl = F[24 * s:24 * s + 24] if s < 13 else self.rstd_fillers()
                self.run_slabs(s, 1, self.p1_mfma(0, ACC_A, swap=isV), fl, dma_per_gap=1)
            t = TMP + 8
            g.e(f"v_and_b32 {vr(t)}, 31, v0")
            g.e(f"v_lshlrev_b32 {vr(t)}, 2, {vr(t)}")
            g.e(f"s_lshl_b32 {sr(sT4)}, {sr(sW)}, 7")
            g.e(f"s_add_u32 {sr(sT4)}, {sr(sT4)}, {MISC}")
            g.e(f"v_add_u32 {vr(t)}, {sr(sT4)}, {vr(t)}")
            g.e(f"v_lshrrev_b32 {vr(t+1)}, 5, v0")
            g.e(f"v_lshlrev_b32 {vr(t+1)}, 4, {vr(t+1)}")
            g.e(f"v_add_u32 {vr(t+1)}, {sr(sT4)}, {vr(t+1)}")
            if isV:
                g.lds(f"ds_write_b32 {vr(t)}, {vr(vRSTD)}")
                for q in range(4):
                    self.sctok = g.lds(f"ds_read_b128 {vr(SC+4*q,4)}, {vr(t+1)} offset:{32*q}")
            else:
                for k in range(5):
                    self.sctok = g.lds(f"ds_write_b32 {vr(t)}, {vr(vRSTD)}")
                for r in range(16): g.e(f"v_mov_b32 {vr(SC+r)}, {vr(vRSTD)}")

        import copy
        g.e(f"s_cmp_ge_u32 {sr(sC)}, 7")
        g.e("s_cbranch_scc1 VSTAGE")
        st = (g.state(), dict(self.dma_tok), dict(self.rd_tok), self.dma_next, self.dma_allowed, dict(self.win))
        kv_stage(False)
        end_state = g.state()
        g.e("s_branch KVDONE")
        g.label("VSTAGE")
        g.e("s_nop 3")
        g.restore(st[0]); self.dma_tok, self.rd_tok, self.dma_next, self.dma_allowed, self.win = st[1], st[2], st[3], st[4], st[5]
        kv_stage(True)
        assert g.state() == end_state, (g.state(), end_state)
        g.label("KVDONE")
        self.ts("kv_done")

        n_issue, n_check = self.nonce_fillers()
        Fkv, hkv = self.pack_store_fillers(ACC_A, vSKV, sr(sT1), 2048,
                                           pre_mul=lambda rg: f"v_mul_f32 {vr(rg)}, {vr(rg)}, {vr(SC + (rg-ACC_A) % 16)}")
        waitsc = (1, lambda: g.wait(lg=self.sctok))
        self.run_slabs(14, 7, self.p1_mfma(14, ACC_B), [n_issue, waitsc] + Fkv, skip_gaps=3)

        def flag(stage, hold):
            def fn():
                g.wait(vm=hold["tok"])
                self.flag_store(stage, None)
            return (4, fn)
        self.run_slabs(21, 7, self.p1_mfma(14, ACC_B), [(8, lambda: None), n_check, (8, lambda: None), flag(0, hkv)])
        self.run_slabs(28, 14, self.p1_mfma(28, ACC_C), self.silu_fillers(ACC_B), skip_gaps=3)
        self.ts("u0_done")
        Fh0, hh0 = self.pack_store_fillers(ACC_C, vSH, sr(sT2), 1024,
                                           pre_mul=lambda rg: f"v_mul_f32 {vr(rg)}, {vr(rg)}, {vr(rg-ACC_C+ACC_B)}")
        self.run_slabs(42, 6, self.p1_mfma(42, ACC_A), Fh0, skip_gaps=3)
        vA, vFH, vFD = SC + 4, SC + 5, SC + 6
        XR = SC + 8
        t = TMP + 4
        P2S = [f"v_lshrrev_b32 {vr(t)}, 2, v0",
               f"v_lshlrev_b32 {vr(t)}, 7, {vr(t)}",
               f"v_bfe_u32 {vr(t+1)}, v0, 3, 1",
               f"v_lshlrev_b32 {vr(t+1)}, 6, {vr(t+1)}",
               f"v_bfe_u32 {vr(t+2)}, v0, 4, 1",
               f"v_lshl_add_u32 {vr(t+1)}, {vr(t+2)}, 5, {vr(t+1)}",
               f"v_and_b32 {vr(t+2)}, 3, v0",
               f"v_lshl_add_u32 {vr(t+1)}, {vr(t+2)}, 3, {vr(t+1)}",
               f"v_add_u32 {vr(P2TR[0])}, {vr(t)}, {vr(t+1)}",
               f"v_xor_b32 {vr(P2TR[1])}, 32, {vr(P2TR[0])}",
               f"v_xor_b32 {vr(P2TR[2])}, 64, {vr(P2TR[0])}",
               f"v_xor_b32 {vr(P2TR[3])}, 96, {vr(P2TR[0])}",
               f"v_lshlrev_b32 {vr(vA)}, 4, v0",
               f"v_min_u32 {vr(vFH)}, 13, v0",
               f"v_lshlrev_b32 {vr(vFH)}, 3, {vr(vFH)}",
               f"s_lshl_b32 {sr(sA2)}, {sr(sRH)}, 2",
               f"s_add_u32 {sr(sA2)}, {sr(sA2)}, {sr(sW)}",
               f"s_lshr_b32 {sr(sT1)}, {sr(sA2)}, 3",
               f"s_lshl_b32 {sr(sT1)}, {sr(sT1)}, 11",
               f"s_bfe_u32 {sr(sT4)}, {sr(sA2)}, 0x20001",
               f"s_lshl_b32 {sr(sT4)}, {sr(sT4)}, 7",
               f"s_add_u32 {sr(sT1)}, {sr(sT1)}, {sr(sT4)}",
               f"s_add_u32 {sr(sT1)}, {sr(sT1)}, {FLAG_WS}",
               f"s_mul_i32 {sr(sA2)}, {sr(sA2)}, 71680"]
        self.run_slabs(48, 8, self.p1_mfma(42, ACC_A), [self.F(s) for s in P2S] + [(8, lambda: None), flag(1, hh0)])
        self.ts("g1_done")

        atok = {}
        a_next = [0]
        a_allowed = [0]
        NA = 56
        cur_step = [0]

        def areg(k): return 32 + 4 * (k % NA)

        def a_issue(n):
            for _ in range(n):
                k = a_next[0]
                if k >= a_allowed[0] or k - NA >= cur_step[0]: return
                ks = ks_list[k]
                g.e(f"s_add_u32 {sr(sT6)}, {sr(sA2)}, {ks*1024}")
                atok[k] = g.vmem(f"buffer_load_dwordx4 {ar(areg(k),4)}, {vr(vA)}, {sr(SWS,4)}, {sr(sT6)} offen sc1")
                a_next[0] += 1
        part_len = {"h0": 28, "h1": 28, "o": 14}
        part_stage = {"h0": 1, "h1": 2, "o": 3}
        pollh = {}

        def poll_i(part):
            def fn():
                if part == "o":
                    g.e(f"v_and_b32 {vr(vFH)}, 1, v0")
                    g.e(f"v_lshlrev_b32 {vr(vFH)}, 3, {vr(vFH)}")
                else:
                    g.e(f"v_min_u32 {vr(vFH)}, 13, v0")
                    g.e(f"v_lshlrev_b32 {vr(vFH)}, 3, {vr(vFH)}")
                pollh[part] = self.poll_issue(vFD, vFH, SWS, sr(sT1), part_stage[part] * 512)
            return fn

        def poll_c(part):
            def fn():
                self.poll_check(pollh[part])
                a_allowed[0] += part_len[part]
            return fn
        sched = {}
        p0 = o.get("poll0", 64)
        sched[p0] = poll_i(order[0]); sched[p0 + 3] = poll_c(order[0])
        s1 = 70 + part_len[order[0]] - o.get("lead1", 14)
        sched[s1] = poll_i(order[1]); sched[s1 + 3] = poll_c(order[1])
        s2 = 70 + part_len[order[0]] + part_len[order[1]] - o.get("lead2", 12)
        sched[s2] = poll_i(order[2]); sched[s2 + 3] = poll_c(order[2])

        def hook(s):
            cur_step[0] = max(0, s - 70)
            if s in sched: sched[s]()
            a_issue(4)
        self.run_slabs(56, 14, self.p1_mfma(56, ACC_B), self.silu_fillers(ACC_A), skip_gaps=3, per_slab_hook=hook)
        self.ts("p1_done")
        FF, SS = ACC_C, ACC_C + 16
        seen = set()

        def p2_mfma(s, f):
            k = s - 70
            ks = ks_list[k]
            if f == 0: g.wait(vm=atok[k])
            d = (FF if ks < 56 else SS) + 4 * f
            c = vr(d, 4) if d in seen else "0"
            seen.add(d)
            g.e(f"v_mfma_f32_16x16x32_bf16 {vr(d,4)}, {ar(16*(s%2)+4*f,4)}, {ar(areg(k),4)}, {c}")
        Fh1, hh1 = self.pack_store_fillers(ACC_B, vSH, sr(sT3), 1024,
                                           pre_mul=lambda rg: f"v_mul_f32 {vr(rg)}, {vr(rg)}, {vr(rg-ACC_B+ACC_A)}")
        self.run_slabs(70, 4, p2_mfma, Fh1, skip_gaps=3, per_slab_hook=hook)
        fl_delay = o.get("h1delay", 5)
        self.run_slabs(74, fl_delay, p2_mfma, [(4, lambda: None), flag(2, hh1)], per_slab_hook=hook)
        vXO, vLW, vLR = TMP + 4, TMP + 5, TMP + 6
        xr = {}

        def xload():
            g.e(f"s_lshl_b32 {sr(sT4)}, {sr(sRH)}, 2")
            g.e(f"s_add_u32 {sr(sT4)}, {sr(sT4)}, {sr(sW)}")
            g.e(f"s_mul_i32 {sr(sT4)}, {sr(sT4)}, {16*896}")
            g.e(f"s_lshl_b32 {sr(sT2)}, {sr(sCT)}, 7")
            g.e(f"s_add_u32 {sr(sT2)}, {sr(sT2)}, {sr(sT4)}")
            g.e(f"s_add_u32 {sr(sT3)}, {sr(sT2)}, {8*896}")
            g.e(f"v_lshrrev_b32 {vr(vXO)}, 3, v0")
            g.e(f"v_mul_u32_u24 {vr(vXO)}, 896, {vr(vXO)}")
            g.e(f"v_and_b32 {vr(vLW)}, 7, v0")
            g.e(f"v_lshl_add_u32 {vr(vXO)}, {vr(vLW)}, 4, {vr(vXO)}")
            g.vmem(f"buffer_load_dwordx4 {vr(XR,4)}, {vr(vXO)}, {sr(SX,4)}, {sr(sT2)} offen")
            xr["t"] = g.vmem(f"buffer_load_dwordx4 {vr(XR+4,4)}, {vr(vXO)}, {sr(SX,4)}, {sr(sT3)} offen")
            g.e(f"s_mul_i32 {sr(sT4)}, {sr(sW)}, 2304")
            g.e(f"s_add_u32 {sr(sT4)}, {sr(sT4)}, {MISC+1024}")
            g.e(f"v_lshrrev_b32 {vr(vLR)}, 3, v0")
            g.e(f"v_mul_u32_u24 {vr(vLR)}, 144, {vr(vLR)}")
            g.e(f"v_lshl_add_u32 {vr(vLR)}, {vr(vLW)}, 4, {vr(vLR)}")
            g.e(f"v_add_u32 {vr(vLR)}, {sr(sT4)}, {vr(vLR)}")
            g.e(f"v_and_b32 {vr(vLW)}, 15, v0")
            g.e(f"v_mul_u32_u24 {vr(vLW)}, 144, {vr(vLW)}")
            g.e(f"v_lshrrev_b32 {vr(TMP+7)}, 4, v0")
            g.e(f"v_lshl_add_u32 {vr(vLW)}, {vr(TMP+7)}, 3, {vr(vLW)}")
            g.e(f"v_add_u32 {vr(vLW)}, {sr(sT4)}, {vr(vLW)}")
        rest0 = 74 + fl_delay
        self.run_slabs(rest0, 140 - rest0, p2_mfma, [(1, xload)], per_slab_hook=hook)
        self.ts("p2_done")
        E = XF(0)
        for r in range(16): g.e(f"v_mul_f32 {vr(E+r)}, {f2u(-LOG2E):#x}, {vr(FF+r)}")
        for r in range(16): g.e(f"v_exp_f32 {vr(E+r)}, {vr(E+r)}")
        for r in range(16): g.e(f"v_add_f32 {vr(E+r)}, 1.0, {vr(E+r)}")
        for r in range(16): g.e(f"v_rcp_f32 {vr(E+r)}, {vr(E+r)}")
        for r in range(16): g.e(f"v_mul_f32 {vr(FF+r)}, {vr(FF+r)}, {vr(SS+r)}")
        for r in range(16): g.e(f"v_mul_f32 {vr(FF+r)}, {vr(FF+r)}, {vr(E+r)}")
        for k in range(8): g.e(f"v_cvt_pk_bf16_f32 {vr(E+16+k)}, {vr(FF+2*k)}, {vr(FF+2*k+1)}")
        for T in range(4):
            wt = g.lds(f"ds_write_b64 {vr(vLW)}, {vr(E+16+2*T,2)} offset:{32*T}")
        g.wait(lg=wt)
        Y = E + 24
        g.lds(f"ds_read_b128 {vr(Y,4)}, {vr(vLR)}")
        rt = g.lds(f"ds_read_b128 {vr(Y+4,4)}, {vr(vLR)} offset:{8*144}")
        g.wait(vm=xr["t"])
        U = E + 32
        for k in range(8):
            g.e(f"v_lshlrev_b32 {vr(U+2*k)}, 16, {vr(XR+k)}")
            g.e(f"v_and_b32 {vr(U+2*k+1)}, 0xffff0000, {vr(XR+k)}")
        g.wait(lg=rt)
        W2 = E + 48
        for k in range(8):
            g.e(f"v_lshlrev_b32 {vr(W2+2*k)}, 16, {vr(Y+k)}")
            g.e(f"v_and_b32 {vr(W2+2*k+1)}, 0xffff0000, {vr(Y+k)}")
        for k in range(16): g.e(f"v_add_f32 {vr(U+k)}, {vr(U+k)}, {vr(W2+k)}")
        for k in range(8): g.e(f"v_cvt_pk_bf16_f32 {vr(Y+k)}, {vr(U+2*k)}, {vr(U+2*k+1)}")
        g.vmem(f"buffer_store_dwordx4 {vr(Y,4)}, {vr(vXO)}, {sr(SOUT,4)}, {sr(sT2)} offen")
        g.vmem(f"buffer_store_dwordx4 {vr(Y+4,4)}, {vr(vXO)}, {sr(SOUT,4)}, {sr(sT3)} offen")
        self.ts("end")
        self.ts_store()
        g.e("s_endpgm")

    def light(self, l):
        g = self.g; o = self.o
        g.c(f"==================== LIGHT {l} ====================")
        self.nts = 0
        lines = [0, 1, 2, 3] if l == 0 else [4, 5, 6, 3]
        g.e(f"s_mov_b32 {sr(sT4)}, {lines[0]*128}")
        self.srd(SKV, P_QKV, 448 * 2688, sT4)
        slabs = []
        for i, ln in enumerate(lines):
            for s in range(14):
                d = dict(srd=SKV, soff=sr(KQ + s // 2), voff=vDQ[s % 2],
                         frags=self.p1_frags() if i < 3 else self.p1_frags(Ts=(l,)))
                if i > 0 and s == 0: d["pre"] = self.srd_bump(SKV, (ln - lines[i - 1]) * 128)
                slabs.append(d)
        self.ring_init(slabs)
        self.dma_issue(12)
        self.ts("issued")
        self.lane_setup()
        self.stats()
        self.start_ring()
        def pprime(i, T):
            return 2 * lines[i] + T - 7 * l
        accs = [ACC_A, ACC_B, ACC_C, SC]
        F = []
        for s in range(13):
            F += self.center_fillers(2 * s + 2) + self.center_fillers(2 * s + 3)
        for s in range(14):
            fl = F[24 * s:24 * s + 24] if s < 13 else self.rstd_fillers()
            self.run_slabs(s, 1, self.p1_mfma(0, accs[0]), fl)
        n_issue, n_check = self.nonce_fillers()
        def scale_f(acc, n=32):
            return [self.F(f"v_mul_f32 {vr(acc+r)}, {vr(acc+r)}, {vr(vRSTD)}") for r in range(n)]
        vKV, vFH, vFD = 5, 6, 8
        KREG = 32
        VREG = 32 + 84
        kvtok = {}

        def kv_setup():
            g.e(f"v_lshlrev_b32 {vr(vKV)}, 4, v0")
            g.e(f"v_and_b32 {vr(vFH)}, 15, v0")
            g.e(f"v_min_u32 {vr(vFH)}, 13, {vr(vFH)}")
            g.e(f"v_lshlrev_b32 {vr(vFH)}, 3, {vr(vFH)}")
            g.e(f"s_lshl_b32 {sr(sT1)}, {sr(sRB)}, 2")
            g.e(f"s_add_u32 {sr(sT1)}, {sr(sT1)}, {sr(sW)}")
            g.e(f"s_sub_u32 {sr(sT2)}, {sr(sT1)}, 1")
            g.e(f"s_max_i32 {sr(sT2)}, {sr(sT2)}, 0")
            for src, dst in ((sT1, sT4), (sT2, sT6)):
                g.e(f"s_lshr_b32 {sr(dst)}, {sr(src)}, 2")
                g.e(f"s_lshl_b32 {sr(dst)}, {sr(dst)}, 11")
                g.e(f"s_and_b32 {sr(sT0)}, {sr(src)}, 3")
                g.e(f"s_lshl_b32 {sr(sT0)}, {sr(sT0)}, 7")
                g.e(f"s_add_u32 {sr(dst)}, {sr(dst)}, {sr(sT0)}")
            g.e(f"v_mov_b32 {vr(TMP+8)}, {sr(sT4)}")
            g.e(f"v_mov_b32 {vr(TMP+9)}, {sr(sT6)}")
            g.e(f"v_and_b32 {vr(TMP+10)}, 16, v0")
            g.e(f"v_cmp_eq_u32 vcc, 0, {vr(TMP+10)}")
            g.e("s_nop 1")
            g.e(f"v_cndmask_b32 {vr(TMP+8)}, {vr(TMP+9)}, {vr(TMP+8)}, vcc")
            g.e(f"v_add_u32 {vr(vFH)}, {vr(vFH)}, {vr(TMP+8)}")
            g.e(f"s_mov_b32 {sr(sT3)}, {FLAG_WS}")
            g.e(f"s_mul_i32 {sr(sT1)}, {sr(sT1)}, 57344")
            g.e(f"s_mul_i32 {sr(sT2)}, {sr(sT2)}, 57344")
            g.e(f"s_add_u32 {sr(sT1)}, {sr(sT1)}, {KV_WS}")
            g.e(f"s_add_u32 {sr(sT2)}, {sr(sT2)}, {KV_WS}")
        ph = {}

        def kv_poll_i(): ph["h"] = self.poll_issue(vFD, vFH, SWS, sr(sT3), 0)
        def kv_poll_c(): self.poll_check(ph["h"])

        def kv_loads():
            L = []
            def ld(key, dst, sbase, off):
                def fn():
                    g.e(f"s_add_u32 {sr(sT6)}, {sr(sbase)}, {off}")
                    kvtok[key] = g.vmem(f"buffer_load_dwordx4 {ar(dst,4)}, {vr(vKV)}, {sr(SWS,4)}, {sr(sT6)} offen sc1")
                return (2, fn)
            for P in range(7):
                Pg = P + 7 * l
                L.append(ld(("K", 0, P), KREG + (0 * 7 + P) * 4, sT2, Pg * 2048 + 1024))
                L.append(ld(("K", 1, P), KREG + (1 * 7 + P) * 4, sT1, Pg * 2048))
                L.append(ld(("K", 2, P), KREG + (2 * 7 + P) * 4, sT1, Pg * 2048 + 1024))
                for hf in range(2):
                    T = 2 * P + hf
                    off = (14 + Pg) * 2048 + hf * 1024
                    L.append(ld(("V", T, 0), VREG + T * 8, sT2, off))
                    L.append(ld(("V", T, 1), VREG + T * 8 + 4, sT1, off))
            return L
        self.run_slabs(14, 14, self.p1_mfma(14, accs[1]),
                       [n_issue] + scale_f(accs[0]) + [(8, kv_setup), n_check], skip_gaps=3)
        self.run_slabs(28, 14, self.p1_mfma(28, accs[2]),
                       scale_f(accs[1]) + [(20, lambda: None), (2, kv_poll_i), (20, lambda: None)], skip_gaps=3)
        self.ts("q3_done")
        self.run_slabs(42, 14, self.p1_mfma(42, accs[3], Ts=(l,)),
                       [(3, kv_poll_c)] + kv_loads() + scale_f(accs[2]), skip_gaps=1)
        self.ts("q_done")
        def QF(rt, P): return XF(rt * 7 + P)
        blocks = [(accs[i] + 16 * T, pprime(i, T)) for i in range(3) for T in range(2)] + [(accs[3], pprime(3, l))]
        for bi, (a, P) in enumerate(blocks):
            if bi == 6:
                for c_, fn in scale_f(accs[3], 16): fn()
            for half in range(2):
                for d in range(2):
                    qa, qb = 2 * half, 2 * half + 1
                    g.e(f"v_cvt_pk_bf16_f32 {vr(QF(0,P)+2*half+d)}, {vr(a+4*qa+2*d)}, {vr(a+4*qa+2*d+1)}")
                    g.e(f"v_cvt_pk_bf16_f32 {vr(QF(1,P)+2*half+d)}, {vr(a+4*qb+2*d)}, {vr(a+4*qb+2*d+1)}")
            for i in range(4): g.e(f"v_permlane32_swap_b32 {vr(QF(0,P)+i)}, {vr(QF(1,P)+i)}")
            for i in range(4): g.e(f"v_permlane16_swap_b32 {vr(QF(0,P)+i)}, {vr(QF(1,P)+i)}")
        self.attention(l, QF, KREG, VREG, kvtok)
        self.ts("end")
        self.ts_store()
        g.e("s_endpgm")

    def attention(self, l, QF, KREG, VREG, kvtok):
        g = self.g
        sODD = 44; sCUR = [46, 48]
        GM = {}
        gm_regs = [50, 52, 54, 56, 58, 64, 66, 72, 74, 76]

        def gmask(gs):
            gs = tuple(sorted(gs))
            if gs not in GM:
                r = gm_regs[len(GM)]
                val = 0
                for x in gs: val |= 0xffff << (16 * x)
                g.e(f"s_mov_b32 {sr(r)}, {val & 0xffffffff:#x}")
                g.e(f"s_mov_b32 {sr(r+1)}, {val >> 32:#x}")
                GM[gs] = r
            return GM[gs]
        for gs in [(0,), (0, 1), (0, 1, 2), (1, 2, 3), (2, 3), (3,)]: gmask(gs)

        def lanemask(fn):
            v = 0
            for ln in range(64):
                if fn(ln % 16, ln // 16): v |= 1 << ln
            return v
        for reg, fn in ((sODD, lambda i, gg: i % 2 == 1), (sCUR[0], lambda i, gg: 2 * gg + 0 <= i // 2),
                        (sCUR[1], lambda i, gg: 2 * gg + 1 <= i // 2)):
            v = lanemask(fn)
            g.e(f"s_mov_b32 {sr(reg)}, {v & 0xffffffff:#x}")
            g.e(f"s_mov_b32 {sr(reg+1)}, {v >> 32:#x}")
        PM = TMP; BIAS = TMP + 4; ONE = TMP + 8; HM = TMP + 9; vOST = TMP + 10
        g.e(f"v_mov_b32 {vr(HM)}, 0x0000ffff")
        g.e(f"v_mov_b32 {vr(HM+2)}, 0xffff0000")
        g.e(f"v_cndmask_b32 {vr(HM)}, {vr(HM)}, {vr(HM+2)}, {sr(sODD,2)}")
        for rho in range(2):
            g.e(f"v_cndmask_b32 {vr(PM+rho)}, {vr(HM)}, 0, {sr(sCUR[rho],2)}")
            g.e(f"v_cndmask_b32 {vr(PM+2+rho)}, 0, {vr(HM)}, {sr(sCUR[rho],2)}")
        g.e(f"s_lshl_b32 {sr(sT4)}, {sr(sRB)}, 2")
        g.e(f"s_add_u32 {sr(sT4)}, {sr(sT4)}, {sr(sW)}")
        g.e(f"s_cmp_eq_u32 {sr(sT4)}, 0")
        g.e(f"s_cselect_b32 {sr(sT0)}, {f2u(-1e30):#x}, 0")
        for r in range(4): g.e(f"v_mov_b32 {vr(BIAS+r)}, {sr(sT0)}")
        g.e(f"v_mov_b32 {vr(ONE)}, 1.0")
        g.e(f"v_lshlrev_b32 {vr(vOST)}, 4, v0")
        g.e(f"s_mul_i32 {sr(sT1)}, {sr(sT4)}, {2*71680}")
        g.e(f"s_add_u32 {sr(sT1)}, {sr(sT1)}, {(56+7*l)*1024}")
        g.e(f"s_add_u32 {sr(sT2)}, {sr(sT1)}, 71680")
        CS = (28 ** -0.5) * LOG2E
        g.e(f"s_mov_b32 {sr(sT3)}, {f2u(CS):#x}")
        def item_regs(slot):
            b = 72 + 38 * slot
            return dict(QM=b, S=b + 8, t=b + 16, P=b + 22, O=b + 26)
        OP = {0: SC, 1: SC + 8}
        last_tok = [None]
        pend = {}

        def item(h, rt, slot):
            R = item_regs(slot)
            I = []
            E = lambda s: I.append(lambda: g.e(s))
            q0, q1 = 7 * h, 7 * h + 6
            Ps = sorted(set([q0 // 8, q1 // 8]))
            qm = []
            for n, P in enumerate(Ps):
                dst = R["QM"] + 4 * n
                for half in range(2):
                    gs = [x for x in range(4) if q0 <= 8 * P + 4 * half + x <= q1]
                    for d in range(2):
                        src = QF(rt, P) + 2 * half + d
                        if len(gs) == 4: E(f"v_mov_b32 {vr(dst+2*half+d)}, {vr(src)}")
                        elif len(gs) == 0: E(f"v_mov_b32 {vr(dst+2*half+d)}, 0")
                        else: E(f"v_cndmask_b32 {vr(dst+2*half+d)}, 0, {vr(src)}, {sr(GM[tuple(gs)],2)}")
                qm.append(dst)
            S = R["S"]
            for kt in range(2):
                for n, P in enumerate(Ps):
                    key = ("K", rt + kt, P)
                    c = vr(S + 4 * kt, 4) if n > 0 else (vr(BIAS, 4) if (kt == 0 and rt == 0) else "0")
                    def mm(key=key, P=P, kt=kt, n=n, c=c):
                        g.wait(vm=kvtok[key])
                        g.e(f"v_mfma_f32_16x16x32_bf16 {vr(S+4*kt,4)}, {ar(KREG+((rt+kt)*7+P)*4,4)}, {vr(qm[n],4)}, {c}")
                    I.append(mm)
            t = R["t"]
            for rho in range(2):
                E(f"v_cndmask_b32 {vr(t+rho)}, {vr(S+2*rho)}, {vr(S+2*rho+1)}, {sr(sODD,2)}")
                E(f"v_cndmask_b32 {vr(t+2+rho)}, {vr(S+4+2*rho)}, {vr(S+4+2*rho+1)}, {sr(sODD,2)}")
            for rho in range(2):
                E(f"v_cndmask_b32 {vr(t+rho)}, {vr(t+rho)}, {vr(t+2+rho)}, {sr(sCUR[rho],2)}")
            E(f"v_max_f32 {vr(t+2)}, {vr(t)}, {vr(t+1)}")
            E(f"v_mov_b32 {vr(t+3)}, {vr(t+2)}")
            E(f"v_permlane32_swap_b32 {vr(t+2)}, {vr(t+3)}")
            E(f"v_max_f32 {vr(t+2)}, {vr(t+2)}, {vr(t+3)}")
            E(f"v_mov_b32 {vr(t+3)}, {vr(t+2)}")
            E(f"v_permlane16_swap_b32 {vr(t+2)}, {vr(t+3)}")
            E(f"v_max_f32 {vr(t+2)}, {vr(t+2)}, {vr(t+3)}")
            E(f"v_sub_f32 {vr(t)}, {vr(t)}, {vr(t+2)}")
            E(f"v_sub_f32 {vr(t+1)}, {vr(t+1)}, {vr(t+2)}")
            E(f"v_mul_f32 {vr(t)}, {sr(sT3)}, {vr(t)}")
            E(f"v_mul_f32 {vr(t+1)}, {sr(sT3)}, {vr(t+1)}")
            E(f"v_exp_f32 {vr(t)}, {vr(t)}")
            E(f"v_exp_f32 {vr(t+1)}, {vr(t+1)}")
            E(f"v_add_f32 {vr(t+2)}, {vr(t)}, {vr(t+1)}")
            E(f"v_mfma_f32_16x16x4_f32 {vr(S,4)}, {vr(ONE)}, {vr(t+2)}, 0")
            E(f"v_rcp_f32 {vr(t+3)}, {vr(S)}")
            E(f"v_mul_f32 {vr(t)}, {vr(t)}, {vr(t+3)}")
            E(f"v_mul_f32 {vr(t+1)}, {vr(t+1)}, {vr(t+3)}")
            E(f"v_cvt_pk_bf16_f32 {vr(t)}, {vr(t)}, {vr(t)}")
            E(f"v_cvt_pk_bf16_f32 {vr(t+1)}, {vr(t+1)}, {vr(t+1)}")
            Pr = R["P"]
            for kt in range(2):
                for rho in range(2):
                    E(f"v_and_b32 {vr(Pr+2*kt+rho)}, {vr(t+rho)}, {vr(PM+2*kt+rho)}")
            Ts = list(range(q0 // 4, q1 // 4 + 1))
            for n, T in enumerate(Ts):
                od = R["O"] + 4 * n
                def pv(T=T, od=od):
                    g.wait(vm=max(kvtok[("V", T, 0)], kvtok[("V", T, 1)]))
                    g.e(f"v_mfma_f32_16x16x32_bf16 {vr(od,4)}, {ar(VREG+T*8+2+2*rt,4)}, {vr(Pr,4)}, 0")
                I.append(pv)
            for n, T in enumerate(Ts):
                od = R["O"] + 4 * n
                gs = [x for x in range(4) if q0 <= 4 * T + x <= q1]
                starts_here = 4 * T >= q0
                ends_here = 4 * T + 3 <= q1
                if not starts_here:
                    def merge(od=od, gs=gs):
                        prev = pend[rt]
                        for r in range(4):
                            g.e(f"v_cndmask_b32 {vr(od+r)}, {vr(prev+r)}, {vr(od+r)}, {sr(GM[tuple(gs)],2)}")
                    I.append(merge)
                if ends_here:
                    P = T // 2
                    dst = OP[rt] + 4 * (P % 2) + 2 * (T % 2)
                    E(f"v_cvt_pk_bf16_f32 {vr(dst)}, {vr(od)}, {vr(od+1)}")
                    E(f"v_cvt_pk_bf16_f32 {vr(dst+1)}, {vr(od+2)}, {vr(od+3)}")
                    if T % 2 == 1:
                        def st(P=P):
                            so = sT1 if rt == 0 else sT2
                            if P >= 4:
                                g.e(f"s_add_u32 {sr(sT6)}, {sr(so)}, 4096")
                                last_tok[0] = g.vmem(f"buffer_store_dwordx4 {vr(OP[rt]+4*(P%2),4)}, {vr(vOST)}, {sr(SWS,4)}, {sr(sT6)} offen offset:{(P-4)*1024} sc1")
                            else:
                                last_tok[0] = g.vmem(f"buffer_store_dwordx4 {vr(OP[rt]+4*(P%2),4)}, {vr(vOST)}, {sr(SWS,4)}, {sr(so)} offen offset:{P*1024} sc1")
                        I.append(st)
                else:
                    def setp(od=od): pend[rt] = od
                    I.append(setp)
            return I
        streams = []
        for h in range(8):
            a = item(h, 0, 2 * (h % 2)); b = item(h, 1, 2 * (h % 2) + 1)
            m = []
            for i in range(max(len(a), len(b))):
                if i < len(a): m.append(a[i])
                if i < len(b): m.append(b[i])
            streams.append(m)
        cur_rest = []
        for h in range(8):
            m = streams[h]
            half = len(m) // 2
            first, second = m[:half], m[half:]
            n1, n2 = len(cur_rest), len(first)
            i = j = 0
            while i < n1 or j < n2:
                if i < n1 and (j >= n2 or i * n2 <= j * n1):
                    cur_rest[i](); i += 1
                else:
                    first[j](); j += 1
            cur_rest = second
        for fn in cur_rest: fn()
        g.wait(vm=last_tok[0])
        self.flag_store(3, None)

    def build(self):
        g = self.g
        self.prologue()
        st0 = g.state()
        self.heavy()
        g.label("LIGHT")
        g.e(f"s_cmp_eq_u32 {sr(sC)}, 1")
        g.e("s_cbranch_scc1 LIGHT1")
        g.restore(st0)
        self.light(0)
        g.label("LIGHT1")
        g.restore(st0)
        self.light(1)
        for L in self.slow:
            g.out += L
        g.label("END")
        g.e("s_endpgm")
        body, ins = fix_hazards(g.out, verbose=self.o.get("verbose", False))
        hdr = open("recurrent_scan__sliding_local_dilated__swiglu_ffn__prompt.s.ref").read().split("; Override launch")[0]
        top = hdr + f"; @launch grid=(256,1,1) block=(256,1,1) lds={LDS_BYTES}\n"
        top += '.amdgcn_target "amdgcn-amd-amdhsa--gfx950"\n.text\n'
        top += f".globl {KNAME}\n.p2align 8\n.type {KNAME},@function\n{KNAME}:\n"
        tail = f''' .section .rodata,"a"
.p2align 6
.amdhsa_kernel {KNAME}
  .amdhsa_next_free_vgpr 512
  .amdhsa_next_free_sgpr 102
  .amdhsa_accum_offset 256
  .amdhsa_group_segment_fixed_size 0
  .amdhsa_kernarg_size 80
  .amdhsa_user_sgpr_count 2
  .amdhsa_user_sgpr_kernarg_segment_ptr 1
  .amdhsa_system_sgpr_workgroup_id_x 1
.end_amdhsa_kernel
'''
        self.nops_inserted = ins
        return top + "\n".join(body) + "\n" + tail.lstrip()


def generate(**opt):
    G_ = Gen(opt)
    s = G_.build()
    return s, G_


if __name__ == "__main__":
    opt = {}
    out = "recurrent_scan__sliding_local_dilated__swiglu_ffn__prompt.s"
    for a in sys.argv[1:]:
        k, v = a.split("=")
        if k == "out": out = v; continue
        try: v = int(v)
        except ValueError: pass
        opt[k] = v
    s, G_ = generate(**opt)
    open(out, "w").write(s)
    print("wrote", out, len(s), "bytes; hazard nops inserted:", G_.nops_inserted)
```
